```python
import torch

def _softmax(x, axis=-1):
    return torch.softmax(x, dim=axis)
def _gelu(x):
    return torch.nn.functional.gelu(x, approximate="tanh")
def _silu(x):
    return torch.nn.functional.silu(x)
def _sigmoid(x):
    return torch.sigmoid(x)
def _layernorm(x, axis=-1, eps=1e-5):
    m = x.mean(dim=axis, keepdim=True)
    v = x.var(dim=axis, keepdim=True, unbiased=False)
    return (x - m) / torch.sqrt(v + eps)
def _scatter_add(tgt, idx, src, axis=0):
    return tgt.clone().index_add_(axis, idx, src)
def _segment_sum(src, seg, n):
    out = torch.zeros((n,) + src.shape[1:], dtype=src.dtype)
    return out.index_add_(0, seg, src)
def _pad(x, pw):
    flat = tuple(v for pair in reversed(pw) for v in pair)
    return torch.nn.functional.pad(x, flat)

kernel_name = 'standalone__instancenorm__sampling'

def setup_inputs():

    _w = (lambda a: (lambda t: t.to(torch.bfloat16) if t.is_floating_point() else t)(torch.as_tensor(a)))
    B, C, H, W = 32, 576, 16, 32
    return {
        "x": _w(abs((lambda *s: torch.randn(*s, dtype=torch.bfloat16) * 0.05)(B, C, H, W))),
        "g": _w((lambda *s: torch.randn(*s, dtype=torch.bfloat16) * 0.05)(C) + 1.0),
        "b": _w((lambda *s: torch.randn(*s, dtype=torch.bfloat16) * 0.4)(C)),
    }

def reference(x, g, b):
    mu = x.mean(axis=(-2, -1), keepdims=True)
    var = ((x - mu) ** 2).mean(axis=(-2, -1), keepdims=True)
    xhat = (x - mu) / torch.sqrt(var + 1e-5)
    return xhat * g.reshape(1, -1, 1, 1) + b.reshape(1, -1, 1, 1)
```

```python
import sys, re
src, dst, mode, spin = sys.argv[1], sys.argv[2], sys.argv[3], int(sys.argv[4])
L = open(src).read().split("\n")
out = []
first_wait_done = False
nvm = 0
for i, l in enumerate(L):
    if l.strip().endswith("_kernel:"):
        out.append(l)
        out.append("    s_memrealtime s[24:25]")
        out.append("    s_load_dwordx4 s[32:35], s[0:1], 32")
        out.append("    v_lshrrev_b32 v60, 6, v0")
        out.append("    v_and_b32 v61, 63, v0")
        continue
    if "s_waitcnt lgkmcnt(0)" in l and not first_wait_done:
        out.append(l)
        out.append("    s_memrealtime s[26:27]")
        first_wait_done = True
        continue
    if "; scale = g * rstd" in l and nvm == 0:
        nvm = 1
        out.append("    s_memrealtime s[28:29]")
        out.append(l)
        continue
    if l.startswith("L_end:"):
        out.append("    s_waitcnt vmcnt(0)")
        out.append("    s_memrealtime s[30:31]")
        out.append("    s_waitcnt lgkmcnt(0)")
        if mode == "dbg":
            out.append("    v_mov_b32 v62, 0")
            for k, s in enumerate((24, 26, 28, 30)):
                out.append(f"    s_not_b32 s36, s{s}")
                out.append(f"    v_writelane_b32 v62, s36, {2*k}")
                out.append(f"    v_writelane_b32 v62, s{s}, {2*k+1}")
            out.append("    v_lshlrev_b32 v63, 2, v61")
            out.append("    s_mov_b64 exec, 0xff")
            out.append("    global_atomic_umax v63, v62, s[32:33]")
        else:
            out.append("    v_mov_b32 v62, 0")
            for k in range(8):
                out.append(f"    v_writelane_b32 v62, s{24+k}, {k}")
            out.append("    s_nop 3")
            out.append("    v_readfirstlane_b32 s36, v60")
            out.append("    s_mul_i32 s37, s2, WPW")
            out.append("    s_add_u32 s36, s36, s37")
            out.append("    s_lshl_b32 s36, s36, 5")
            out.append("    v_lshl_add_u32 v63, v61, 2, s36")
            out.append("    s_mov_b64 exec, 0xff")
            out.append("    global_store_dword v63, v62, s[34:35]")
        if spin:
            out.append("L_spin:")
            out.append("    s_sleep 4")
            out.append("    s_memrealtime s[30:31]")
            out.append("    s_waitcnt lgkmcnt(0)")
            out.append("    s_sub_u32 s36, s30, s24")
            out.append(f"    s_cmp_lt_u32 s36, {spin}")
            out.append("    s_cbranch_scc1 L_spin")
        out.append(l)
        continue
    l = re.sub(r"next_free_vgpr (\d+)", lambda m: f"next_free_vgpr {max(64,int(m.group(1)))}", l)
    l = re.sub(r"accum_offset (\d+)", lambda m: f"accum_offset {max(64,int(m.group(1)))}", l)
    l = re.sub(r"next_free_sgpr (\d+)", "next_free_sgpr 40", l)
    out.append(l)
s = "\n".join(out)
m = re.search(r"block=\((\d+),", s)
s = s.replace("WPW", str(int(m.group(1))//64))
open(dst, "w").write(s)
```

```python
import sys, re
src, dst, stat, amp = sys.argv[1], sys.argv[2], int(sys.argv[3]), int(sys.argv[4])
txt = open(src).read()
m = re.search(r"grid=\((\d+),1,1\) block=\((\d+),", txt)
nwg, wpw = int(m.group(1)), int(m.group(2))//64
nw = nwg*wpw
nv0 = int(re.search(r"next_free_vgpr (\d+)", txt).group(1))
VB = nv0
L = txt.split("\n")
out = []
A = out.append
first_wait_done = False
last_scale = max(i for i, l in enumerate(L) if "; scale = g * rstd" in l)
for i, l in enumerate(L):
    if l.strip().endswith("_kernel:"):
        A(l)
        A("    s_memrealtime s[24:25]")
        A("    s_load_dwordx4 s[32:35], s[0:1], 32")
        A(f"    v_lshrrev_b32 v{VB}, 6, v0")
        A(f"    v_and_b32 v{VB+1}, 63, v0")
        continue
    if "s_waitcnt lgkmcnt(0)" in l and not first_wait_done:
        A(l); A("    s_memrealtime s[26:27]"); first_wait_done = True; continue
    if i == last_scale:
        A("    s_memrealtime s[28:29]"); A(l); continue
    if l.startswith("L_end:"):
        A("    s_waitcnt vmcnt(0)")
        A("    s_memrealtime s[30:31]")
        A("    s_waitcnt lgkmcnt(0)")
        A("    v_mov_b32 v2, 0")
        for k in range(4):
            A(f"    v_writelane_b32 v2, s{24+2*k}, {k}")
        A(f"    v_readfirstlane_b32 s36, v{VB}")
        A(f"    s_mul_i32 s37, s2, {wpw}")
        A("    s_add_u32 s36, s36, s37")
        A("    s_lshl_b32 s37, s36, 4")
        A(f"    v_lshl_add_u32 v3, v{VB+1}, 2, s37")
        A("    s_mov_b64 exec, 0xf")
        A("    global_store_dword v3, v2, s[34:35] sc0 sc1")
        A("    s_mov_b64 exec, -1")
        A("    s_cmp_lg_u32 s36, 0")
        A("    s_cbranch_scc1 L_end")
        A("L_spin0:")
        A("    s_sleep 8")
        A("    s_memrealtime s[30:31]")
        A("    s_waitcnt lgkmcnt(0)")
        A("    s_sub_u32 s36, s30, s24")
        A("    s_cmp_lt_u32 s36, 2500")
        A("    s_cbranch_scc1 L_spin0")
        for k in range(4):
            A(f"    v_mov_b32 v{8+k}, 0x7fffffff")
            A(f"    v_mov_b32 v{12+k}, 0x80000000")
            A(f"    v_mov_b32 v{16+k}, 0")
            A(f"    v_mov_b32 v{20+k}, 0")
        A(f"    v_lshlrev_b32 v3, 4, v{VB+1}")
        A("    s_mov_b32 s37, 0")
        A("L_gather:")
        A("    global_load_dwordx4 v[4:7], v3, s[34:35] sc0 sc1")
        A("    s_waitcnt vmcnt(0)")
        for k in range(4):
            A(f"    v_subrev_u32 v{4+k}, s24, v{4+k}")
            A(f"    v_min_i32 v{8+k}, v{8+k}, v{4+k}")
            A(f"    v_max_i32 v{12+k}, v{12+k}, v{4+k}")
            A(f"    v_add_u32 v{16+k}, v{16+k}, v{4+k}")
        for k in range(3):
            A(f"    v_sub_u32 v2, v{5+k}, v{4+k}")
            A(f"    v_max_i32 v{20+k}, v{20+k}, v2")
        A("    v_add_u32 v3, 1024, v3")
        A("    s_add_u32 s37, s37, 64")
        A(f"    s_cmp_lt_u32 s37, {nw}")
        A("    s_cbranch_scc1 L_gather")
        for k in range(4):
            A(f"    s_mov_b32 s{40+k}, 0x7fffffff")
            A(f"    s_mov_b32 s{44+k}, 0x80000000")
            A(f"    s_mov_b32 s{48+k}, 0")
            A(f"    s_mov_b32 s{52+k}, 0")
        A("    s_mov_b32 s37, 0")
        A("L_lanes:")
        for k in range(15):
            A(f"    v_readlane_b32 s36, v{8+k}, s37")
            op = "s_min_i32" if k < 4 else ("s_add_u32" if 8 <= k < 12 else "s_max_i32")
            A("    s_nop 3")
            A(f"    {op} s{40+k}, s{40+k}, s36")
        A("    s_add_u32 s37, s37, 1")
        A("    s_cmp_lt_u32 s37, 64")
        A("    s_cbranch_scc1 L_lanes")
        for k in range(4):
            A(f"    v_cvt_f32_i32 v2, s{48+k}")
            A(f"    v_mul_f32 v2, {1.0/nw!r}, v2")
            A("    v_cvt_i32_f32 v2, v2")
            A("    s_nop 1")
            A(f"    v_readfirstlane_b32 s{48+k}, v2")
        A("    s_nop 3")
        A("    s_sub_u32 s55, 0, s40")
        for k in range(1, 12):
            A(f"    s_sub_u32 s{40+k}, s{40+k}, s40")
        A("    s_mov_b32 s40, 0")
        A("    v_mov_b32 v2, 0")
        for k in range(16):
            A(f"    v_writelane_b32 v2, s{40+k}, {k}")
        A(f"    v_lshlrev_b32 v3, 2, v{VB+1}")
        A("    s_mov_b64 exec, 0xffff")
        A("    global_store_dword v3, v2, s[32:33]")
        A(f"    s_mul_i32 s38, s{40+stat}, {amp}")
        A("    s_min_u32 s38, s38, 30000")
        A("    s_add_u32 s38, s38, 8000")
        A("    s_sub_u32 s38, s38, s55")
        A("    s_min_u32 s38, s38, 40000")
        A("L_spin1:")
        A("    s_memrealtime s[30:31]")
        A("    s_waitcnt lgkmcnt(0)")
        A("    s_sub_u32 s36, s30, s24")
        A("    s_cmp_lt_u32 s36, s38")
        A("    s_cbranch_scc1 L_spin1")
        A(l)
        continue
    l = re.sub(r"next_free_vgpr (\d+)", f"next_free_vgpr {VB+2}", l)
    l = re.sub(r"accum_offset (\d+)", f"accum_offset {(VB+2+3)//4*4}", l)
    l = re.sub(r"next_free_sgpr (\d+)", "next_free_sgpr 60", l)
    A(l)
open(dst, "w").write("\n".join(out))
```

```python
import sys, re
src, dst = sys.argv[1], sys.argv[2]
txt = open(src).read()
nv0 = int(re.search(r"next_free_vgpr (\d+)", txt).group(1))
VB = nv0
L = txt.split("\n"); out=[]; A=out.append
for l in L:
    if l.strip().endswith("_kernel:"):
        A(l)
        A("    s_memrealtime s[24:25]")
        A("    s_load_dwordx2 s[32:33], s[0:1], 32")
        A(f"    v_mov_b32 v{VB}, v0")
        continue
    if l.startswith("L_end:"):
        A("    s_waitcnt vmcnt(0)")
        A(f"    v_readfirstlane_b32 s36, v{VB}")
        A("    s_nop 3")
        A("    s_or_b32 s36, s36, s2")
        A("    s_cmp_lg_u32 s36, 0")
        A("    s_cbranch_scc1 L_end")
        A("L_spin0:")
        A("    s_sleep 8")
        A("    s_memrealtime s[30:31]")
        A("    s_waitcnt lgkmcnt(0)")
        A("    s_sub_u32 s36, s30, s24")
        A("    s_cmp_lt_u32 s36, 2500")
        A("    s_cbranch_scc1 L_spin0")
        A("    s_mov_b64 exec, 1")
        A("    v_mov_b32 v10, 0")
        for bi,(lo,hi) in enumerate(((4,5),(10,11))):
            A("    s_mov_b32 s40, 0")
            A("    s_mov_b32 s41, 0")
            A("    s_mov_b32 s46, 0")
            A(f"L_pg{bi}:")
            A("    s_lshl_b32 s42, s40, 21")
            A("    s_add_u32 s42, s42, 0x8000")
            A("    v_mov_b32 v2, s42")
            A(f"    global_load_dword v3, v2, s[{lo}:{hi}] offset:4032")
            A("    s_waitcnt vmcnt(0)")
            A("    s_mov_b32 s43, 0")
            for r in range(6):
                for h in range(2):
                    A(f"    v_add_u32 v4, {h*8192 + r*512 + (r&1)*4096}, v2")
                    A("    s_memtime s[28:29]")
                    A("    s_waitcnt lgkmcnt(0)")
                    A(f"    global_load_dword v3, v4, s[{lo}:{hi}]")
                    A("    s_waitcnt vmcnt(0)")
                    A("    s_memtime s[30:31]")
                    A("    s_waitcnt lgkmcnt(0)")
                    A("    s_sub_u32 s44, s30, s28")
                    A("    s_min_u32 s44, s44, 1200")
                    A(f"    {'s_add_u32' if h==0 else 's_sub_u32'} s43, s43, s44")
                    if r==5: A(f"    s_mov_b32 s{47+h}, s44")
            A("    s_cmp_gt_i32 s43, 0")
            A("    s_cselect_b32 s45, 1, 0")
            A("    s_lshl_b32 s45, s45, s40")
            A("    s_or_b32 s41, s41, s45")
            A("    s_abs_i32 s45, s43")
            A("    s_cmp_eq_u32 s40, 0")
            A("    s_cselect_b32 s46, s45, s46")
            A("    s_min_u32 s46, s46, s45")
            A("    s_add_u32 s40, s40, 1")
            A("    s_cmp_lt_u32 s40, 9")
            A(f"    s_cbranch_scc1 L_pg{bi}")
            A(f"    v_writelane_b32 v10, s41, {bi*6}")
            A(f"    v_writelane_b32 v10, s46, {bi*6+1}")
            A(f"    v_writelane_b32 v10, s{lo}, {bi*6+2}")
            A(f"    v_writelane_b32 v10, s{hi}, {bi*6+3}")
            A(f"    v_writelane_b32 v10, s47, {bi*6+4}")
            A(f"    v_writelane_b32 v10, s48, {bi*6+5}")
        A("    s_getreg_b32 s45, hwreg(HW_REG_XCC_ID)")
        A("    v_writelane_b32 v10, s45, 12")
        A("    v_writelane_b32 v10, s32, 13")
        A("    v_writelane_b32 v10, s6, 14")
        A("    v_writelane_b32 v10, s0, 15")
        A("    s_mov_b64 exec, 0xffff")
        A(f"    v_lshlrev_b32 v3, 2, v{VB}")
        A("    global_store_dword v3, v10, s[32:33]")
    l = re.sub(r"next_free_vgpr (\d+)", f"next_free_vgpr {VB+1}", l)
    l = re.sub(r"accum_offset (\d+)", f"accum_offset {(VB+1+3)//4*4}", l)
    l = re.sub(r"next_free_sgpr (\d+)", "next_free_sgpr 64", l)
    A(l)
open(dst,"w").write("\n".join(out))
```

```python
import sys, re
src, dst, sel, unit = sys.argv[1], sys.argv[2], int(sys.argv[3]), int(sys.argv[4])
txt = open(src).read()
nv0 = int(re.search(r"next_free_vgpr (\d+)", txt).group(1))
nwg = int(re.search(r"grid=\((\d+),", txt).group(1))
VB = nv0
L = txt.split("\n"); out=[]; A=out.append
for l in L:
    if l.strip().endswith("_kernel:"):
        A(l)
        A("    s_memrealtime s[24:25]")
        A("    s_load_dwordx4 s[32:35], s[0:1], 32")
        A(f"    v_mov_b32 v{VB}, v0")
        continue
    if l.startswith("L_end:"):
        A("    s_waitcnt vmcnt(0)")
        A(f"    v_readfirstlane_b32 s36, v{VB}")
        A("    s_getreg_b32 s49, hwreg(HW_REG_XCC_ID)")
        A("    s_and_b32 s49, s49, 7")
        A("    s_nop 3")
        A("    s_cmp_lg_u32 s36, 0")
        A("    s_cbranch_scc1 L_end")
        A("    s_sub_u32 s37, s49, s2")
        A("    s_and_b32 s37, s37, 7")
        A("    v_mov_b32 v2, s37")
        A("    s_lshl_b32 s38, s2, 2")
        A("    v_mov_b32 v3, s38")
        A("    s_mov_b64 exec, 1")
        A("    global_store_dword v3, v2, s[34:35] sc0 sc1")
        A("    s_mov_b64 exec, -1")
        A("    s_cmp_lg_u32 s2, 0")
        A("    s_cbranch_scc1 L_end")
        A("L_spin0:")
        A("    s_sleep 8")
        A("    s_memrealtime s[30:31]")
        A("    s_waitcnt lgkmcnt(0)")
        A("    s_sub_u32 s36, s30, s24")
        A("    s_cmp_lt_u32 s36, 2500")
        A("    s_cbranch_scc1 L_spin0")
        A(f"    v_lshlrev_b32 v3, 2, v{VB}")
        A("    s_mov_b32 s50, 0")
        A("    s_mov_b32 s51, 0")
        A("L_cnt:")
        A("    global_load_dword v2, v3, s[34:35] sc0 sc1")
        A("    s_waitcnt vmcnt(0)")
        A("    v_cmp_ne_u32 vcc, s37, v2")
        A("    s_nop 4")
        A("    s_bcnt1_i32_b64 s52, vcc")
        A("    s_add_u32 s50, s50, s52")
        A("    v_add_u32 v3, 256, v3")
        A("    s_add_u32 s51, s51, 64")
        A(f"    s_cmp_lt_u32 s51, {nwg}")
        A("    s_cbranch_scc1 L_cnt")
        A("    s_mov_b64 exec, 1")
        A("    v_mov_b32 v10, 0")
        for bi,(lo,hi) in enumerate(((4,5),(10,11))):
            A("    s_mov_b32 s40, 0"); A("    s_mov_b32 s41, 0"); A("    s_mov_b32 s46, 0")
            A(f"L_pg{bi}:")
            A("    s_lshl_b32 s42, s40, 21")
            A("    s_add_u32 s42, s42, 0xc000")
            A(f"    s_and_b32 s53, s{lo}, 0x3fff")
            A("    s_sub_u32 s42, s42, s53")
            A("    v_mov_b32 v2, s42")
            A(f"    global_load_dword v3, v2, s[{lo}:{hi}] offset:4032")
            A("    s_waitcnt vmcnt(0)")
            A("    s_mov_b32 s43, 0")
            for r in range(6):
                for h in range(2):
                    A(f"    v_add_u32 v4, {h*8192 + r*512 + (r&1)*4096}, v2")
                    A("    s_memtime s[28:29]")
                    A("    s_waitcnt lgkmcnt(0)")
                    A(f"    global_load_dword v3, v4, s[{lo}:{hi}]")
                    A("    s_waitcnt vmcnt(0)")
                    A("    s_memtime s[30:31]")
                    A("    s_waitcnt lgkmcnt(0)")
                    A("    s_sub_u32 s44, s30, s28")
                    A("    s_min_u32 s44, s44, 1200")
                    A(f"    {'s_add_u32' if h==0 else 's_sub_u32'} s43, s43, s44")
            A("    s_cmp_gt_i32 s43, 0")
            A("    s_cselect_b32 s45, 1, 0")
            A("    s_lshl_b32 s45, s45, s40")
            A("    s_or_b32 s41, s41, s45")
            A("    s_abs_i32 s45, s43")
            A("    s_cmp_eq_u32 s40, 0")
            A("    s_cselect_b32 s46, s45, s46")
            A("    s_min_u32 s46, s46, s45")
            A("    s_add_u32 s40, s40, 1")
            A("    s_cmp_lt_u32 s40, 9")
            A(f"    s_cbranch_scc1 L_pg{bi}")
            A("    s_cmp_ge_u32 s49, 4")
            A("    s_cselect_b32 s45, 0x155, 0xaa" if False else "    s_cselect_b32 s45, 0x1ff, 0")
            A("    s_xor_b32 s41, s41, s45")
            A("    s_xor_b32 s41, s41, 0xaa")
            A(f"    s_mov_b32 s{55+bi}, s41")
            A(f"    v_writelane_b32 v10, s41, {bi*4}")
            A(f"    v_writelane_b32 v10, s46, {bi*4+1}")
            A(f"    v_writelane_b32 v10, s{lo}, {bi*4+2}")
            A(f"    v_writelane_b32 v10, s{hi}, {bi*4+3}")
        A("    v_writelane_b32 v10, s49, 12")
        A("    v_writelane_b32 v10, s50, 13")
        A("    s_mov_b64 exec, 0xffff")
        A(f"    v_lshlrev_b32 v3, 2, v{VB}")
        A("    global_store_dword v3, v10, s[32:33]")
        A("    s_mov_b32 s54, 0")
        A("    s_bfe_u32 s57, s10, 0x4000c")
        A("    s_bfe_u32 s58, s4, 0x4000c")
        A("    s_lshl_b32 s58, s58, 4")
        A("    s_or_b32 s57, s57, s58")
        A("    s_add_u32 s58, s50, 63")
        A("    s_lshr_b32 s58, s58, 6")
        A("    s_lshl_b32 s58, s58, 3")
        A("    s_or_b32 s58, s58, s49")
        A(f"    s_mul_i32 s38, s{54+sel}, {unit}")
        A("    s_min_u32 s38, s38, 200000")
        A("    s_add_u32 s38, s38, 15000")
        A("L_spin1:")
        A("    s_memrealtime s[30:31]")
        A("    s_waitcnt lgkmcnt(0)")
        A("    s_sub_u32 s36, s30, s24")
        A("    s_cmp_lt_u32 s36, s38")
        A("    s_cbranch_scc1 L_spin1")
    l = re.sub(r"next_free_vgpr (\d+)", f"next_free_vgpr {VB+1}", l)
    l = re.sub(r"accum_offset (\d+)", f"accum_offset {(VB+1+3)//4*4}", l)
    l = re.sub(r"next_free_sgpr (\d+)", "next_free_sgpr 64", l)
    A(l)
open(dst,"w").write("\n".join(out))
```

```python
import sys, re
src, dst, sel, unit = sys.argv[1], sys.argv[2], int(sys.argv[3]), int(sys.argv[4])
sh = int(sys.argv[5]) if len(sys.argv)>5 else 21
txt = open(src).read()
nv0 = int(re.search(r"next_free_vgpr (\d+)", txt).group(1))
nwg = int(re.search(r"grid=\((\d+),", txt).group(1))
VB = nv0
L = txt.split("\n"); out=[]; A=out.append
for l in L:
    if l.strip().endswith("_kernel:"):
        A(l)
        A("    s_memrealtime s[24:25]")
        A("    s_load_dwordx4 s[32:35], s[0:1], 32")
        A(f"    v_mov_b32 v{VB}, v0")
        continue
    if l.startswith("L_end:"):
        A("    s_waitcnt vmcnt(0)")
        A(f"    v_readfirstlane_b32 s36, v{VB}")
        A("    s_getreg_b32 s49, hwreg(HW_REG_XCC_ID)")
        A("    s_and_b32 s49, s49, 7")
        A("    s_nop 3")
        A("    s_cmp_lg_u32 s36, 0")
        A("    s_cbranch_scc1 L_end")
        A("    s_sub_u32 s37, s49, s2")
        A("    s_and_b32 s37, s37, 7")
        A("    v_mov_b32 v2, s37")
        A("    s_lshl_b32 s38, s2, 2")
        A("    v_mov_b32 v3, s38")
        A("    s_mov_b64 exec, 1")
        A("    global_store_dword v3, v2, s[34:35] sc0 sc1")
        A("    s_mov_b64 exec, -1")
        A("    s_cmp_lg_u32 s2, 0")
        A("    s_cbranch_scc1 L_end")
        A("L_spin0:")
        A("    s_sleep 8")
        A("    s_memrealtime s[30:31]")
        A("    s_waitcnt lgkmcnt(0)")
        A("    s_sub_u32 s36, s30, s24")
        A("    s_cmp_lt_u32 s36, 2500")
        A("    s_cbranch_scc1 L_spin0")
        A(f"    v_lshlrev_b32 v3, 2, v{VB}")
        A("    s_mov_b32 s50, 0")
        A("    s_mov_b32 s51, 0")
        A("L_cnt:")
        A("    global_load_dword v2, v3, s[34:35] sc0 sc1")
        A("    s_waitcnt vmcnt(0)")
        A("    v_cmp_ne_u32 vcc, s37, v2")
        A("    s_nop 4")
        A("    s_bcnt1_i32_b64 s52, vcc")
        A("    s_add_u32 s50, s50, s52")
        A("    v_add_u32 v3, 256, v3")
        A("    s_add_u32 s51, s51, 64")
        A(f"    s_cmp_lt_u32 s51, {nwg}")
        A("    s_cbranch_scc1 L_cnt")
        A("    s_mov_b64 exec, 1")
        A("    v_mov_b32 v10, 0")
        for bi,(lo,hi) in enumerate(((4,5),(10,11))):
            A("    s_mov_b32 s40, 0"); A("    s_mov_b32 s41, 0"); A("    s_mov_b32 s46, 0")
            A(f"L_pg{bi}:")
            A(f"    s_lshl_b32 s42, s40, {sh}")
            A("    s_add_u32 s42, s42, 0xc000")
            A(f"    s_and_b32 s53, s{lo}, 0x3fff")
            A("    s_sub_u32 s42, s42, s53")
            A("    v_mov_b32 v2, s42")
            A(f"    global_load_dword v3, v2, s[{lo}:{hi}] offset:4032")
            A("    s_waitcnt vmcnt(0)")
            A("    s_mov_b32 s43, 0")
            for r in range(6):
                for h in range(2):
                    A(f"    v_add_u32 v4, {h*8192 + r*512 + (r&1)*4096}, v2")
                    A("    s_memtime s[28:29]")
                    A("    s_waitcnt lgkmcnt(0)")
                    A(f"    global_load_dword v3, v4, s[{lo}:{hi}]")
                    A("    s_waitcnt vmcnt(0)")
                    A("    s_memtime s[30:31]")
                    A("    s_waitcnt lgkmcnt(0)")
                    A("    s_sub_u32 s44, s30, s28")
                    A("    s_min_u32 s44, s44, 1200")
                    A(f"    {'s_add_u32' if h==0 else 's_sub_u32'} s43, s43, s44")
            A("    s_cmp_gt_i32 s43, 0")
            A("    s_cselect_b32 s45, 1, 0")
            A("    s_lshl_b32 s45, s45, s40")
            A("    s_or_b32 s41, s41, s45")
            A("    s_abs_i32 s45, s43")
            A("    s_cmp_eq_u32 s40, 0")
            A("    s_cselect_b32 s46, s45, s46")
            A("    s_min_u32 s46, s46, s45")
            A("    s_add_u32 s40, s40, 1")
            A("    s_cmp_lt_u32 s40, 9")
            A(f"    s_cbranch_scc1 L_pg{bi}")
            A("    s_cmp_ge_u32 s49, 4")
            A("    s_cselect_b32 s45, 0x155, 0xaa" if False else "    s_cselect_b32 s45, 0x1ff, 0")
            A("    s_xor_b32 s41, s41, s45")
            A("    s_xor_b32 s41, s41, 0xaa" if sh==21 else "    s_nop 0")
            A(f"    s_mov_b32 s{55+bi}, s41")
            A(f"    v_writelane_b32 v10, s41, {bi*4}")
            A(f"    v_writelane_b32 v10, s46, {bi*4+1}")
            A(f"    v_writelane_b32 v10, s{lo}, {bi*4+2}")
            A(f"    v_writelane_b32 v10, s{hi}, {bi*4+3}")
        A("    v_writelane_b32 v10, s49, 12")
        A("    v_writelane_b32 v10, s50, 13")
        A("    s_mov_b64 exec, 0xffff")
        A(f"    v_lshlrev_b32 v3, 2, v{VB}")
        A("    global_store_dword v3, v10, s[32:33]")
        A("    s_mov_b32 s54, 0")
        A("    s_bfe_u32 s57, s10, 0x4000c")
        A("    s_bfe_u32 s58, s4, 0x4000c")
        A("    s_lshl_b32 s58, s58, 4")
        A("    s_or_b32 s57, s57, s58")
        A("    s_add_u32 s58, s50, 63")
        A("    s_lshr_b32 s58, s58, 6")
        A("    s_lshl_b32 s58, s58, 3")
        A("    s_or_b32 s58, s58, s49")
        A("    s_bfe_u32 s59, s4, 0x90010")
        A("    s_bfe_u32 s60, s4, 0x90017")
        A(f"    s_mul_i32 s38, s{54+sel}, {unit}")
        A("    s_min_u32 s38, s38, 200000")
        A("    s_add_u32 s38, s38, 15000")
        A("L_spin1:")
        A("    s_memrealtime s[30:31]")
        A("    s_waitcnt lgkmcnt(0)")
        A("    s_sub_u32 s36, s30, s24")
        A("    s_cmp_lt_u32 s36, s38")
        A("    s_cbranch_scc1 L_spin1")
    l = re.sub(r"next_free_vgpr (\d+)", f"next_free_vgpr {VB+1}", l)
    l = re.sub(r"accum_offset (\d+)", f"accum_offset {(VB+1+3)//4*4}", l)
    l = re.sub(r"next_free_sgpr (\d+)", "next_free_sgpr 64", l)
    A(l)
open(dst,"w").write("\n".join(out))
```

```python
import sys, re
src, dst, stat, amp = sys.argv[1], sys.argv[2], int(sys.argv[3]), int(sys.argv[4])
m1, m2 = sys.argv[5], sys.argv[6]
txt = open(src).read()
m = re.search(r"grid=\((\d+),1,1\) block=\((\d+),", txt)
nwg, wpw = int(m.group(1)), int(m.group(2))//64
nw = nwg*wpw
nv0 = int(re.search(r"next_free_vgpr (\d+)", txt).group(1))
VB = nv0
L = txt.split("\n")
out = []
A = out.append
first_wait_done = False
for i, l in enumerate(L):
    if l.strip().endswith("_kernel:"):
        A(l)
        A("    s_memrealtime s[24:25]")
        A("    s_load_dwordx4 s[32:35], s[0:1], 32")
        A(f"    v_lshrrev_b32 v{VB}, 6, v0")
        A(f"    v_and_b32 v{VB+1}, 63, v0")
        continue
    if ";@S"+m1 in l: A("    s_memrealtime s[26:27]")
    if ";@S"+m2 in l: A("    s_memrealtime s[28:29]")
    if l.startswith("L_end:"):
        A("    s_waitcnt vmcnt(0)")
        A("    s_memrealtime s[30:31]")
        A("    s_waitcnt lgkmcnt(0)")
        A("    v_mov_b32 v2, 0")
        for k in range(4):
            A(f"    v_writelane_b32 v2, s{24+2*k}, {k}")
        A(f"    v_readfirstlane_b32 s36, v{VB}")
        A(f"    s_mul_i32 s37, s2, {wpw}")
        A("    s_add_u32 s36, s36, s37")
        A("    s_lshl_b32 s37, s36, 4")
        A(f"    v_lshl_add_u32 v3, v{VB+1}, 2, s37")
        A("    s_mov_b64 exec, 0xf")
        A("    global_store_dword v3, v2, s[34:35] sc0 sc1")
        A("    s_mov_b64 exec, -1")
        A("    s_cmp_lg_u32 s36, 0")
        A("    s_cbranch_scc1 L_end")
        A("L_spin0:")
        A("    s_sleep 8")
        A("    s_memrealtime s[30:31]")
        A("    s_waitcnt lgkmcnt(0)")
        A("    s_sub_u32 s36, s30, s24")
        A("    s_cmp_lt_u32 s36, 2500")
        A("    s_cbranch_scc1 L_spin0")
        for k in range(4):
            A(f"    v_mov_b32 v{8+k}, 0x7fffffff")
            A(f"    v_mov_b32 v{12+k}, 0x80000000")
            A(f"    v_mov_b32 v{16+k}, 0")
            A(f"    v_mov_b32 v{20+k}, 0")
        A(f"    v_lshlrev_b32 v3, 4, v{VB+1}")
        A("    s_mov_b32 s37, 0")
        A("L_gather:")
        A("    global_load_dwordx4 v[4:7], v3, s[34:35] sc0 sc1")
        A("    s_waitcnt vmcnt(0)")
        for k in range(4):
            A(f"    v_subrev_u32 v{4+k}, s24, v{4+k}")
            A(f"    v_min_i32 v{8+k}, v{8+k}, v{4+k}")
            A(f"    v_max_i32 v{12+k}, v{12+k}, v{4+k}")
            A(f"    v_add_u32 v{16+k}, v{16+k}, v{4+k}")
        for k in range(3):
            A(f"    v_sub_u32 v2, v{5+k}, v{4+k}")
            A(f"    v_max_i32 v{20+k}, v{20+k}, v2")
        A("    v_add_u32 v3, 1024, v3")
        A("    s_add_u32 s37, s37, 64")
        A(f"    s_cmp_lt_u32 s37, {nw}")
        A("    s_cbranch_scc1 L_gather")
        for k in range(4):
            A(f"    s_mov_b32 s{40+k}, 0x7fffffff")
            A(f"    s_mov_b32 s{44+k}, 0x80000000")
            A(f"    s_mov_b32 s{48+k}, 0")
            A(f"    s_mov_b32 s{52+k}, 0")
        A("    s_mov_b32 s37, 0")
        A("L_lanes:")
        for k in range(15):
            A(f"    v_readlane_b32 s36, v{8+k}, s37")
            op = "s_min_i32" if k < 4 else ("s_add_u32" if 8 <= k < 12 else "s_max_i32")
            A("    s_nop 3")
            A(f"    {op} s{40+k}, s{40+k}, s36")
        A("    s_add_u32 s37, s37, 1")
        A("    s_cmp_lt_u32 s37, 64")
        A("    s_cbranch_scc1 L_lanes")
        for k in range(4):
            A(f"    v_cvt_f32_i32 v2, s{48+k}")
            A(f"    v_mul_f32 v2, {1.0/nw!r}, v2")
            A("    v_cvt_i32_f32 v2, v2")
            A("    s_nop 1")
            A(f"    v_readfirstlane_b32 s{48+k}, v2")
        A("    s_nop 3")
        A("    s_sub_u32 s55, 0, s40")
        for k in range(1, 12):
            A(f"    s_sub_u32 s{40+k}, s{40+k}, s40")
        A("    s_mov_b32 s40, 0")
        A("    v_mov_b32 v2, 0")
        for k in range(16):
            A(f"    v_writelane_b32 v2, s{40+k}, {k}")
        A(f"    v_lshlrev_b32 v3, 2, v{VB+1}")
        A("    s_mov_b64 exec, 0xffff")
        A("    global_store_dword v3, v2, s[32:33]")
        A(f"    s_mul_i32 s38, s{40+stat}, {amp}")
        A("    s_min_u32 s38, s38, 30000")
        A("    s_add_u32 s38, s38, 8000")
        A("    s_sub_u32 s38, s38, s55")
        A("    s_min_u32 s38, s38, 40000")
        A("L_spin1:")
        A("    s_memrealtime s[30:31]")
        A("    s_waitcnt lgkmcnt(0)")
        A("    s_sub_u32 s36, s30, s24")
        A("    s_cmp_lt_u32 s36, s38")
        A("    s_cbranch_scc1 L_spin1")
        A(l)
        continue
    l = re.sub(r"next_free_vgpr (\d+)", f"next_free_vgpr {VB+2}", l)
    l = re.sub(r"accum_offset (\d+)", f"accum_offset {(VB+2+3)//4*4}", l)
    l = re.sub(r"next_free_sgpr (\d+)", "next_free_sgpr 60", l)
    A(l)
open(dst, "w").write("\n".join(out))
```

```python
import sys, re
src, dst, stat, amp = sys.argv[1], sys.argv[2], int(sys.argv[3]), int(sys.argv[4])
m1, m2 = sys.argv[5], sys.argv[6]
txt = open(src).read()
m = re.search(r"grid=\((\d+),1,1\) block=\((\d+),", txt)
nwg, wpw = int(m.group(1)), int(m.group(2))//64
nw = nwg*wpw
nv0 = int(re.search(r"next_free_vgpr (\d+)", txt).group(1))
VB = nv0
L = txt.split("\n")
out = []
def _sh(l):
    l=re.sub(r"s\[(\d+):(\d+)\]", lambda m: f"s[{int(m.group(1))+40}:{int(m.group(2))+40}]" if int(m.group(1))>=24 else m.group(0), l)
    l=re.sub(r"\bs(\d+)\b", lambda m: f"s{int(m.group(1))+40}" if int(m.group(1))>=24 else m.group(0), l)
    return l
A = lambda l: out.append(_sh(l))
O = out.append
first_wait_done = False
for i, l in enumerate(L):
    if l.strip().endswith("_kernel:"):
        O(l)
        A("    s_memrealtime s[24:25]")
        A("    s_load_dwordx4 s[32:35], s[0:1], 32")
        A(f"    v_lshrrev_b32 v{VB}, 6, v0")
        A(f"    v_and_b32 v{VB+1}, 63, v0")
        continue
    if ";@S"+m1 in l: A("    s_memrealtime s[26:27]")
    if ";@S"+m2 in l: A("    s_memrealtime s[28:29]")
    if l.startswith("L_end:"):
        A("    s_waitcnt vmcnt(0)")
        A("    s_memrealtime s[30:31]")
        A("    s_waitcnt lgkmcnt(0)")
        A("    v_mov_b32 v2, 0")
        for k in range(4):
            A(f"    v_writelane_b32 v2, s{24+2*k}, {k}")
        A(f"    v_readfirstlane_b32 s36, v{VB}")
        A(f"    s_mul_i32 s37, s2, {wpw}")
        A("    s_add_u32 s36, s36, s37")
        A("    s_lshl_b32 s37, s36, 4")
        A(f"    v_lshl_add_u32 v3, v{VB+1}, 2, s37")
        A("    s_mov_b64 exec, 0xf")
        A("    global_store_dword v3, v2, s[34:35] sc0 sc1")
        A("    s_mov_b64 exec, -1")
        A("    s_cmp_lg_u32 s36, 0")
        A("    s_cbranch_scc1 L_end")
        A("L_spin0:")
        A("    s_sleep 8")
        A("    s_memrealtime s[30:31]")
        A("    s_waitcnt lgkmcnt(0)")
        A("    s_sub_u32 s36, s30, s24")
        A("    s_cmp_lt_u32 s36, 2500")
        A("    s_cbranch_scc1 L_spin0")
        for k in range(4):
            A(f"    v_mov_b32 v{8+k}, 0x7fffffff")
            A(f"    v_mov_b32 v{12+k}, 0x80000000")
            A(f"    v_mov_b32 v{16+k}, 0")
            A(f"    v_mov_b32 v{20+k}, 0")
        A(f"    v_lshlrev_b32 v3, 4, v{VB+1}")
        A("    s_mov_b32 s37, 0")
        A("L_gather:")
        A("    global_load_dwordx4 v[4:7], v3, s[34:35] sc0 sc1")
        A("    s_waitcnt vmcnt(0)")
        for k in range(4):
            A(f"    v_subrev_u32 v{4+k}, s24, v{4+k}")
            A(f"    v_min_i32 v{8+k}, v{8+k}, v{4+k}")
            A(f"    v_max_i32 v{12+k}, v{12+k}, v{4+k}")
            A(f"    v_add_u32 v{16+k}, v{16+k}, v{4+k}")
        for k in range(3):
            A(f"    v_sub_u32 v2, v{5+k}, v{4+k}")
            A(f"    v_max_i32 v{20+k}, v{20+k}, v2")
        A("    v_add_u32 v3, 1024, v3")
        A("    s_add_u32 s37, s37, 64")
        A(f"    s_cmp_lt_u32 s37, {nw}")
        A("    s_cbranch_scc1 L_gather")
        for k in range(4):
            A(f"    s_mov_b32 s{40+k}, 0x7fffffff")
            A(f"    s_mov_b32 s{44+k}, 0x80000000")
            A(f"    s_mov_b32 s{48+k}, 0")
            A(f"    s_mov_b32 s{52+k}, 0")
        A("    s_mov_b32 s37, 0")
        A("L_lanes:")
        for k in range(15):
            A(f"    v_readlane_b32 s36, v{8+k}, s37")
            op = "s_min_i32" if k < 4 else ("s_add_u32" if 8 <= k < 12 else "s_max_i32")
            A("    s_nop 3")
            A(f"    {op} s{40+k}, s{40+k}, s36")
        A("    s_add_u32 s37, s37, 1")
        A("    s_cmp_lt_u32 s37, 64")
        A("    s_cbranch_scc1 L_lanes")
        for k in range(4):
            A(f"    v_cvt_f32_i32 v2, s{48+k}")
            A(f"    v_mul_f32 v2, {1.0/nw!r}, v2")
            A("    v_cvt_i32_f32 v2, v2")
            A("    s_nop 1")
            A(f"    v_readfirstlane_b32 s{48+k}, v2")
        A("    s_nop 3")
        A("    s_sub_u32 s55, 0, s40")
        for k in range(1, 12):
            A(f"    s_sub_u32 s{40+k}, s{40+k}, s40")
        A("    s_mov_b32 s40, 0")
        A("    v_mov_b32 v2, 0")
        for k in range(16):
            A(f"    v_writelane_b32 v2, s{40+k}, {k}")
        A(f"    v_lshlrev_b32 v3, 2, v{VB+1}")
        A("    s_mov_b64 exec, 0xffff")
        A("    global_store_dword v3, v2, s[32:33]")
        A(f"    s_mul_i32 s38, s{40+stat}, {amp}")
        A("    s_min_u32 s38, s38, 30000")
        A("    s_add_u32 s38, s38, 8000")
        A("    s_sub_u32 s38, s38, s55")
        A("    s_min_u32 s38, s38, 40000")
        A("L_spin1:")
        A("    s_memrealtime s[30:31]")
        A("    s_waitcnt lgkmcnt(0)")
        A("    s_sub_u32 s36, s30, s24")
        A("    s_cmp_lt_u32 s36, s38")
        A("    s_cbranch_scc1 L_spin1")
        O(l)
        continue
    l = re.sub(r"next_free_vgpr (\d+)", f"next_free_vgpr {VB+2}", l)
    l = re.sub(r"accum_offset (\d+)", f"accum_offset {(VB+2+3)//4*4}", l)
    l = re.sub(r"next_free_sgpr (\d+)", "next_free_sgpr 100", l)
    O(l)
open(dst, "w").write("\n".join(out))
```
